```python
import torch

def _softmax(x, axis=-1):
    return torch.softmax(x, dim=axis)
def _gelu(x):
    return torch.nn.functional.gelu(x, approximate="tanh")
def _silu(x):
    return torch.nn.functional.silu(x)
def _sigmoid(x):
    return torch.sigmoid(x)
def _layernorm(x, axis=-1, eps=1e-5):
    m = x.mean(dim=axis, keepdim=True)
    v = x.var(dim=axis, keepdim=True, unbiased=False)
    return (x - m) / torch.sqrt(v + eps)
def _scatter_add(tgt, idx, src, axis=0):
    return tgt.clone().index_add_(axis, idx, src)
def _segment_sum(src, seg, n):
    out = torch.zeros((n,) + src.shape[1:], dtype=src.dtype)
    return out.index_add_(0, seg, src)
def _pad(x, pw):
    flat = tuple(v for pair in reversed(pw) for v in pair)
    return torch.nn.functional.pad(x, flat)

kernel_name = 'sequential_preLN__softmax_full_mha__dense_activation_silu__prompt'

def setup_inputs():

    _w = (lambda a: (lambda t: t.to(torch.bfloat16) if t.is_floating_point() else t)(torch.as_tensor(a)))
    def _A_setup():
        B, S, D = 1, 2048, 640
        return {
            "x": _w((lambda *s: torch.randn(*s, dtype=torch.bfloat16) * 0.05)(B, S, D)),
            "wqkv": _w((lambda *s: torch.randn(*s, dtype=torch.bfloat16) * 0.05)(D, 3 * D)),
            "wo": _w((lambda *s: torch.randn(*s, dtype=torch.bfloat16) * 0.05)(D, D)),
        }
    _A_in = _A_setup()

    def _B_setup():
        B, S, D, F = 1, 2048, 640, 1728
        return {
            "x": _w((lambda *s: torch.randn(*s, dtype=torch.bfloat16) * 0.05)(B, S, D)),
            "w1": _w((lambda *s: torch.randn(*s, dtype=torch.bfloat16) * 1.6)(D, F) * (D ** -0.5)),
            "w2": _w((lambda *s: torch.randn(*s, dtype=torch.bfloat16) * 0.2)(F, D) * (F ** -0.5)),
        }
    _B_in = _B_setup()

    return {
        "A_x": _A_in["x"],
        "A_wqkv": _A_in["wqkv"],
        "A_wo": _A_in["wo"],
        "B_x": _B_in["x"],
        "B_w1": _B_in["w1"],
        "B_w2": _B_in["w2"],
    }

def reference(A_x, A_wqkv, A_wo, B_x, B_w1, B_w2):
    def _A_ref(x, wqkv, wo):
        B, S, D = x.shape
        H = 32; Dh = D // H
        qkv = (lambda x, *d: x.permute(*d))((x @ wqkv).reshape(B, S, 3, H, Dh), 2, 0, 3, 1, 4)
        q, k, v = qkv[0], qkv[1], qkv[2]
        scale = Dh ** -0.5
        scores = torch.einsum("bhqd,bhkd->bhqk", q, k) * scale
        p = _softmax(scores, axis=-1)
        o = torch.einsum("bhqk,bhkd->bhqd", p, v)
        return (lambda x, *d: x.permute(*d))(o, 0, 2, 1, 3).reshape(B, S, D) @ wo

    def _B_ref(x, w1, w2):
        h = torch.einsum("bsd,df->bsf", x, w1)
        h = _silu(h)
        out = torch.einsum("bsf,fd->bsd", h, w2)
        return out

    x = A_x
    h = x + _A_ref(_layernorm(x, axis=-1), A_wqkv, A_wo)
    h2 = h + _B_ref(_layernorm(h, axis=-1), B_w1, B_w2)
    return h2
```

```python
import re

class Asm:
    def __init__(self):
        self.lines = []
    def __call__(self, s=""):
        for l in s.split("\n"):
            l = l.strip()
            if l:
                self.lines.append(l)
    def label(self, n):
        self.lines.append(n + ":")
    def nop(self, n):
        while n > 0:
            k = min(n, 16)
            self.lines.append(f"s_nop {k-1}")
            n -= k
    def text(self):
        out = []
        for l in self.lines:
            if l.endswith(":") or l.startswith("."):
                out.append(l)
            else:
                out.append("    " + l)
        return "\n".join(out) + "\n"

def vr(b, n=1, p="v"):
    return f"{p}{b}" if n == 1 else f"{p}[{b}:{b+n-1}]"
def ar(b, n=1): return vr(b, n, "a")
def sr(b, n=1): return vr(b, n, "s")

REG = re.compile(r"\b([vas])(\d+)\b|\b([vas])\[(\d+):(\d+)\]")
def regs(op):
    out = set()
    for m in REG.finditer(op):
        if m.group(1):
            out.add((m.group(1), int(m.group(2))))
        else:
            for i in range(int(m.group(4)), int(m.group(5)) + 1):
                out.add((m.group(3), i))
    if re.search(r"\bvcc\b", op): out |= {("s", "vcc")}
    if re.search(r"\bm0\b", op): out |= {("s", "m0")}
    if re.search(r"\bexec\b", op): out |= {("s", "exec")}
    return out

TRANS = ("v_exp_", "v_log_", "v_rcp_", "v_rsq_", "v_sqrt_", "v_sin_", "v_cos_")
def mfma_passes(m):
    if "32x32x4_2b" in m: return 16
    if "4x4x4_16b" in m: return 2
    if "32x32x" in m: return 8
    if "16x16x" in m: return 4
    raise ValueError(m)

class I:
    def __init__(self, line, idx):
        self.line = line; self.idx = idx
        l = line.split(";")[0].strip()
        p = l.split(None, 1)
        self.m = p[0]
        ops = [o.strip() for o in re.split(r",(?![^\[]*\])", p[1])] if len(p) > 1 else []
        self.ops = ops
        m = self.m
        self.ws = 1
        self.kind = "other"
        self.w = set(); self.r = set()
        self.srcC = set(); self.srcAB = set()
        if m == "s_nop":
            self.ws = int(ops[0], 0) + 1; self.kind = "nop"; return
        if m.startswith("v_mfma"):
            self.kind = "mfma"; self.passes = mfma_passes(m)
            self.w = regs(ops[0]); self.srcAB = regs(ops[1]) | regs(ops[2]); self.srcC = regs(ops[3].split()[0])
            self.r = self.srcAB | self.srcC
        elif m.startswith("v_"):
            self.kind = "valu"
            nd = 1
            if m.startswith(("v_add_co", "v_sub_co", "v_addc_co", "v_subb_co", "v_mad_u64", "v_div_scale")): nd = 2
            if m.startswith(("v_swap", "v_permlane32_swap", "v_permlane16_swap")):
                self.w = regs(ops[0]) | regs(ops[1]); self.r = set(self.w)
            else:
                for o in ops[:nd]: self.w |= regs(o)
                for o in ops[nd:]: self.r |= regs(o)
                if m.startswith(("v_fmac", "v_dot2c", "v_writelane", "v_pk_fmac")) or "UNUSED_PRESERVE" in l: self.r |= regs(ops[0])
                if m.startswith("v_cmpx"): self.w |= {("s", "exec")}
            self.trans = m.startswith(TRANS)
            self.dot = m.startswith("v_dot")
            self.dpp = any(k in l for k in ("quad_perm", "row_shr", "row_shl", "row_ror", "row_bcast", "row_mirror", "row_half_mirror", "wave_"))
            self.sdwa = "_sdwa" in m or ("op_sel" in l and not m.startswith("v_pk_"))
        elif m.startswith("ds_"):
            self.kind = "ds"
            if m.startswith(("ds_read", "ds_bpermute", "ds_permute", "ds_swizzle")):
                self.w = regs(ops[0])
                for o in ops[1:]: self.r |= regs(o)
            else:
                for o in ops: self.r |= regs(o)
        elif m.startswith(("buffer_", "global_")):
            self.kind = "vmem"
            self.lds = bool(re.search(r"\blds\b", l)) or "_lds_" in m
            self.store = "store" in m or "atomic" in m
            if "load" in m and not self.lds:
                self.w = regs(ops[0])
                for o in ops[1:]: self.r |= regs(o)
            else:
                for o in ops: self.r |= regs(o)
                if "atomic" in m and "sc0" in l:
                    self.w = regs(ops[0])
            if self.lds: self.r |= {("s", "m0")}
            self.wide = set()
            if self.store and ("x4" in m or "x3" in m):
                self.wide = regs(ops[0]) if m.startswith("buffer_") else regs(ops[1])
        elif m.startswith("s_"):
            self.kind = "salu"
            if m.startswith(("s_cmp", "s_waitcnt", "s_barrier", "s_cbranch", "s_branch", "s_setprio", "s_endpgm", "s_sleep", "s_bitcmp")):
                for o in ops: self.r |= regs(o)
            elif ops:
                self.w = regs(ops[0])
                for o in ops[1:]: self.r |= regs(o)
                if "saveexec" in m: self.w |= {("s", "exec")}

def need(p, c):
    n = 0
    vec = lambda s: {x for x in s if x[0] in "va"}
    sca = lambda s: {x for x in s if x[0] == "s"}
    if p.kind == "valu":
        if c.kind == "mfma" and vec(p.w) & c.r: n = max(n, 3 if p.dot else 2)
        if c.kind == "mfma" and ("s", "exec") in p.w: n = max(n, 4)
        if c.kind == "valu":
            if p.trans and not c.trans and p.w & c.r: n = max(n, 1)
            if c.m.startswith("v_permlane") and vec(p.w) & c.r: n = max(n, 2)
            if c.m.startswith(("v_readlane", "v_readfirstlane")) and vec(p.w) & c.r: n = max(n, 1)
            if c.dpp and vec(p.w) & c.r: n = max(n, 2)
            if sca(p.w) & c.r: n = max(n, 4 if c.m.startswith(("v_readlane", "v_writelane", "v_div_fmas")) else 2)
            if p.sdwa and p.w & (c.r | c.w): n = max(n, 1)
            if p.dot and p.w & (c.r | c.w):
                same = p.m == c.m and not (p.w & (regs(c.ops[1]) | regs(c.ops[2])))
                if not same: n = max(n, 3)
            if ("s", "exec") in p.w and (c.dpp): n = max(n, 5)
            if ("s", "exec") in p.w and c.m.startswith(("v_readlane", "v_readfirstlane", "v_writelane", "v_permlane")): n = max(n, 4)
        if c.kind in ("vmem", "ds"):
            if c.kind == "vmem" and sca(p.w) & c.r: n = max(n, 5)
            if p.dot and p.w & c.r: n = max(n, 3)
            if p.trans and p.w & c.r: n = max(n, 1)
        if c.kind == "salu" and sca(p.w) & c.r: n = max(n, 2)
    if p.kind == "mfma":
        t = {2: 0, 4: 1, 8: 2, 16: 3}[p.passes]
        if c.kind == "mfma":
            if p.w & c.srcAB: n = max(n, (5, 8, 12, 20)[t])
            if p.w & c.srcC:
                if p.w == c.srcC and p.passes == c.passes: n = max(n, (2, 0, 0, 0)[t])
                else: n = max(n, (4, 6, 10, 18)[t])
            elif p.w & c.w and not (p.w == c.w and p.passes == c.passes):
                n = max(n, (4, 6, 10, 18)[t])
        elif c.kind in ("valu", "ds", "vmem"):
            if p.w & (c.r | c.w): n = max(n, (5, 8, 12, 20)[t])
            if c.kind == "valu" and p.srcC & c.w: n = max(n, (1, 3, 7, 15)[t])
    if p.kind == "salu":
        if ("s", "m0") in p.w and ((c.kind == "vmem" and c.lds) or "addtid" in c.m): n = max(n, 1)
    if p.kind == "vmem" and p.wide:
        if p.wide & c.w: n = max(n, 2 if c.kind in ("valu", "mfma") else 1)
    return n

def check(lines, name=""):
    ins = []; labels = {}
    for l in lines:
        s = l.split(";")[0].strip()
        if not s or s.startswith("."): continue
        if s.endswith(":"):
            labels[s[:-1]] = len(ins); continue
        ins.append(I(s, len(ins)))
    bad = 0
    W = 22
    def succs(i):
        x = ins[i]
        if x.m == "s_endpgm": return []
        if x.m == "s_branch": return [labels[x.ops[0]]]
        if x.m.startswith("s_cbranch"): return [i + 1, labels[x.ops[0]]]
        return [i + 1]
    seen = set()
    for i, p in enumerate(ins):
        if p.kind in ("nop", "other"): continue
        stack = [(j, 0) for j in succs(i)]
        vis = {}
        while stack:
            j, d = stack.pop()
            if j >= len(ins) or d >= W: continue
            if j in vis and vis[j] <= d: continue
            vis[j] = d
            c = ins[j]
            if c.kind != "nop":
                n = need(p, c)
                if n > d and (i, j) not in seen:
                    seen.add((i, j)); bad += 1
                    print(f"HAZARD[{name}] need {n} have {d}:\n    {p.line}\n    {c.line}")
            for k in succs(j): stack.append((k, d + c.ws))
    return bad
```

```python
from asmlib import *
import layout as L
import struct, math
STP = "sc1"
def f2u(x): return struct.unpack("<I", struct.pack("<f", x))[0]

def k1_table():
    out = []
    for nb5 in range(6):
        for fi in range(4):
            gs = [0]*8; ent = [0, 0]
            for gp in range(2):
                for hh in range(2):
                    if nb5 < 5:
                        it = L.QK[nb5][4*fi + 2*gp + hh]
                        ga, gb = it["g"]
                        fcol = fi >> 1
                        in1 = 4 if it["rem"] else fcol*2 + it["hh"]
                        in2 = 4 if it["rem"] else (fcol^1)*2 + it["hh"]
                        e = it["h"][0] | it["h"][1] << 5 | in1 << 10 | in2 << 13
                        ent[gp] |= e << (16*hh)
                    else:
                        ga, gb = 8*fi + 2*(2*gp) + hh, 8*fi + 2*(2*gp+1) + hh
                    gs[2*(2*gp) + hh] = ga; gs[2*(2*gp+1) + hh] = gb
            lo = sum(gs[i] << (8*i) for i in range(4)); hi = sum(gs[4+i] << (8*i) for i in range(4))
            out += [lo, hi, ent[0], ent[1]]
    return out

def gen_k1(name):
    a = Asm()
    vL = 1
    vDX, vDW = 2, 6
    vAX = 10
    vAW = 18
    vX, vW = 20, 36
    vACC = 52
    vSUM, vSQ, vCS = 116, 120, 124
    vONE = 128
    vST = 130
    vT = 140
    X = lambda b, t: vX + 8*b + 4*t
    W = lambda b, f: vW + 8*b + 4*f
    ACC = lambda f, t: vACC + 32*f + 16*t
    sX, sW, sWS = 12, 16, 20
    sWave, sMb, sNb, sFcol, sTrow = 24, 25, 26, 27, 28
    sT0, sT1 = 32, 36
    sOffX, sOffW, sM0 = 40, 41, 42
    sMask = 44
    a.label(name)
    a(f"""
    s_cmp_ge_u32 s2, 256
    s_cbranch_scc1 {name}_end
    s_load_dwordx4 s[4:7], s[0:1], 0
    s_load_dwordx2 s[8:9], s[0:1], 32
    s_load_dwordx2 s[10:11], s[0:1], 64
    v_lshrrev_b32 v{vT}, 6, v0
    v_and_b32 v{vL}, 63, v0
    v_readfirstlane_b32 s{sWave}, v{vT}
    s_and_b32 s3, s2, 7
    s_lshr_b32 s29, s2, 3
    s_lshr_b32 s{sMb}, s3, 1
    s_lshl_b32 s{sMb}, s{sMb}, 2
    s_and_b32 s30, s29, 3
    s_add_u32 s{sMb}, s{sMb}, s30
    s_and_b32 s{sNb}, s3, 1
    s_lshl_b32 s{sNb}, s{sNb}, 3
    s_lshr_b32 s30, s29, 2
    s_add_u32 s{sNb}, s{sNb}, s30
    s_cmp_eq_u32 s{sNb}, 15
    s_cbranch_scc1 {name}_spare
    s_and_b32 s{sFcol}, s{sWave}, 1
    s_lshr_b32 s{sTrow}, s{sWave}, 1
    s_sub_u32 s30, s{sNb}, 5
    s_cmp_lt_u32 s{sNb}, 5
    s_cselect_b32 s30, s{sNb}, s30
    s_min_u32 s30, s30, 5
    s_lshl_b32 s30, s30, 2
    s_lshl_b32 s31, s{sFcol}, 1
    s_add_u32 s30, s30, s31
    s_add_u32 s30, s30, s{sTrow}
    s_lshl_b32 s30, s30, 4
    s_xor_b32 s31, s30, 16
    s_getpc_b64 s[52:53]
    {name}_pc:
    s_add_u32 s52, s52, {name}_tab-{name}_pc
    s_addc_u32 s53, s53, 0
    s_load_dwordx4 s[{sT0}:{sT0+3}], s[52:53], s30
    s_load_dwordx4 s[{sT1}:{sT1+3}], s[52:53], s31
    v_lshrrev_b32 v{vT}, 3, v{vL}
    v_mul_u32_u24 v{vT}, 1280, v{vT}
    v_lshrrev_b32 v{vT+1}, 4, v{vL}
    v_and_b32 v{vT+2}, 7, v{vL}
    v_xor_b32 v{vT+2}, v{vT+2}, v{vT+1}
    v_lshl_add_u32 v{vDX}, v{vT+2}, 4, v{vT}
    v_xor_b32 v{vDX+1}, 64, v{vDX}
    v_add_u32 v{vDX+1}, {10240-1024}, v{vDX+1}
    v_add_u32 v{vDX+2}, {2*(10240-1024)}, v{vDX}
    v_add_u32 v{vDX+3}, {2*(10240-1024)}, v{vDX+1}
    v_mul_u32_u24 v{vT}, 3840, v{vT+1}
    v_lshlrev_b32 v{vT+2}, 2, v{vT+1}
    v_and_b32 v{vT+3}, 15, v{vL}
    v_xor_b32 v{vT+2}, v{vT+2}, v{vT+3}
    v_lshl_add_u32 v{vDW}, v{vT+2}, 4, v{vT}
    v_add_u32 v{vDW+1}, {15360-1024}, v{vDW}
    v_add_u32 v{vDW+2}, {2*(15360-1024)}, v{vDW}
    v_add_u32 v{vDW+3}, {3*(15360-1024)}, v{vDW}
    s_lshl_b32 s30, s{sMb}, 2
    s_add_u32 s30, s30, s{sWave}
    s_mul_i32 s{sOffX}, s30, 40960
    s_mul_i32 s{sOffW}, s{sWave}, 61440
    s_lshl_b32 s30, s{sNb}, 8
    s_add_u32 s{sOffW}, s{sOffW}, s30
    s_lshl_b32 s{sM0}, s{sWave}, 12
    s_mov_b32 s{sX+2}, {2048*1280}
    s_mov_b32 s{sX+3}, 0x20000
    s_mov_b32 s{sW+2}, {640*3840}
    s_mov_b32 s{sW+3}, 0x20000
    s_mov_b32 s{sWS+2}, {L.WS_END}
    s_mov_b32 s{sWS+3}, 0x20000
    s_waitcnt lgkmcnt(0)
    s_mov_b32 s{sX}, s4
    s_mov_b32 s{sX+1}, s5
    s_mov_b32 s{sW}, s6
    s_mov_b32 s{sW+1}, s7
    s_mov_b32 s{sWS}, s10
    s_mov_b32 s{sWS+1}, s11
    """)
    def dma_ops(t):
        slot = (t % 5) * 32768
        ops = []
        ops.append(f"s_add_u32 m0, s{sM0}, {slot}\ns_nop 0\nbuffer_load_dwordx4 v{vDX}, s[{sX}:{sX+3}], s{sOffX} offen lds")
        for p in range(1, 4):
            ops.append(f"buffer_load_dwordx4 v{vDX+p}, s[{sX}:{sX+3}], s{sOffX} offen offset:{1024*p} lds")
        ops.append(f"s_add_u32 m0, s{sM0}, {slot+16384}\ns_add_u32 s{sOffX}, s{sOffX}, 128\nbuffer_load_dwordx4 v{vDW}, s[{sW}:{sW+3}], s{sOffW} offen lds")
        for p in range(1, 4):
            ops.append(f"buffer_load_dwordx4 v{vDW+p}, s[{sW}:{sW+3}], s{sOffW} offen offset:{1024*p} lds")
        ops[-1] += f"\ns_add_u32 s{sOffW}, s{sOffW}, {64*3840}"
        return ops
    for t in range(5):
        for o in dma_ops(t): a(o)
    a(f"""
    v_and_b32 v{vT}, 31, v{vL}
    v_lshrrev_b32 v{vT+1}, 5, v{vL}         ; hh
    v_bfe_u32 v{vT+2}, v{vL}, 1, 3          ; (row>>1)&7
    v_xor_b32 v{vT+2}, v{vT+2}, v{vT+1}
    v_lshlrev_b32 v{vT+2}, 4, v{vT+2}
    v_lshl_add_u32 v{vT+2}, v{vT}, 7, v{vT+2}
    s_lshl_b32 s30, s{sWave}, 12
    v_add_u32 v{vAX}, s30, v{vT+2}
    v_xor_b32 v{vAX+1}, 32, v{vAX}
    v_xor_b32 v{vAX+2}, 64, v{vAX}
    v_xor_b32 v{vAX+3}, 96, v{vAX}
    v_xor_b32 v{vAX+4}, 4096, v{vAX}
    v_xor_b32 v{vAX+5}, 4096, v{vAX+1}
    v_xor_b32 v{vAX+6}, 4096, v{vAX+2}
    v_xor_b32 v{vAX+7}, 4096, v{vAX+3}
    v_bfe_u32 v{vT+2}, v{vL}, 2, 2          ; r
    v_bfe_u32 v{vT+3}, v{vL}, 4, 1          ; fsel
    v_and_b32 v{vT+4}, 3, v{vL}             ; c
    v_lshl_add_u32 v{vT+3}, v{vT+3}, 2, v{vT+4}   ; rho
    v_lshlrev_b32 v{vT+3}, 3, v{vT+3}
    v_lshl_add_u32 v{vT+4}, v{vT+1}, 3, v{vT+2}   ; 8hh + r
    v_lshlrev_b32 v{vT+4}, 8, v{vT+4}
    v_lshlrev_b32 v{vT+2}, 3, v{vT+2}       ; r<<3
    """)
    for fl, st in enumerate((sT0, sT1)):
        a(f"""
        v_lshrrev_b64 v[{vT+6}:{vT+7}], v{vT+3}, s[{st}:{st+1}]
        v_and_b32 v{vT+6}, 31, v{vT+6}
        v_xor_b32 v{vT+6}, v{vT+6}, v{vT+2}
        v_lshl_add_u32 v{vAW+fl}, v{vT+6}, 3, v{vT+4}
        """)
    for i in range(12): a(f"v_mov_b32 v{vSUM+i}, 0")
    a(f"v_mov_b32 v{vONE}, 0x3f803f80\nv_mov_b32 v{vONE+1}, 0x3f803f80")
    a(f"""
    s_lshl_b32 s29, s{sMb}, 1
    s_add_u32 s29, s29, s{sTrow}            ; pt
    s_cmp_ge_u32 s{sNb}, 10
    s_cbranch_scc1 {name}_v
    """)

    def reads(n):
        t, s = n // 4, n % 4
        b = n & 1
        so = ((t % 5) & 1) * 32768 if (t % 5) < 4 else 0
        ops = []
        for tl in range(2):
            ops.append(f"ds_read_b128 {vr(X(b,tl),4)}, v{vAX+4*tl+s} offset:{so}")
        for fl in range(2):
            for h in range(2):
                ops.append(f"ds_read_b64_tr_b16 {vr(W(b,fl)+2*h,2)}, v{vAW+fl} offset:{so + 16384 + (16*s + 4*h)*256}")
        return [ops[0], ops[2], ops[3], ops[1], ops[4], ops[5]]
    def base(t): return ((t % 5) // 2) * 65536
    def mainloop(vorient):
        a(f"s_waitcnt vmcnt(32)\ns_barrier")
        for o in reads(0): a(o)
        for n in range(40):
            t, s = n // 4, n % 4
            b = n & 1
            def M(f, tl):
                c = "0" if n == 0 else vr(ACC(f,tl),16)
                A, B = vr(W(b,f),4), vr(X(b,tl),4)
                if vorient: A, B = B, A
                return f"v_mfma_f32_32x32x16_bf16 {vr(ACC(f,tl),16)}, {A}, {B}, {c}"
            sm = "v_mfma_f32_4x4x4_16b_bf16"
            stat = []
            for h in range(2):
                stat.append(f"{sm} {vr(vSUM,4)}, {vr(vONE,2)}, {vr(X(b,0)+2*h,2)}, {vr(vSUM,4)}")
                stat.append(f"{sm} {vr(vSQ,4)}, {vr(X(b,0)+2*h,2)}, {vr(X(b,0)+2*h,2)}, {vr(vSQ,4)}")
                stat.append(f"{sm} {vr(vCS,4)}, {vr(vONE,2)}, {vr(W(b,0)+2*h,2)}, {vr(vCS,4)}")
            fill = []
            pre = []
            if n < 39:
                if s == 3:
                    rem = min(9, t + 4) - (t + 1)
                    pre.append(f"s_waitcnt vmcnt({8*rem})\ns_barrier")
                    d = base(t+1) - base(t)
                    if d != 0:
                        for i in range(10):
                            pre.append(f"v_add_u32 v{vAX+i}, {hex(d & 0xffffffff)}, v{vAX+i}")
                fill += reads(n + 1)
            dm = []
            if s == 3 and t + 5 <= 9: dm = dma_ops(t + 5)[:4]
            if s == 0 and t >= 1 and t + 4 <= 9: dm = dma_ops(t + 4)[4:]
            a("s_waitcnt lgkmcnt(0)")
            a(M(0,0))
            for o in pre: a(o)
            for o in fill[:3]: a(o)
            a(M(0,1))
            for o in fill[3:]: a(o)
            for o in stat[:3]: a(o)
            a(M(1,0))
            for o in dm[:2]: a(o)
            for o in stat[3:]: a(o)
            a(M(1,1))
            for o in dm[2:]: a(o)
        a(f"""
        s_mov_b32 s54, 0xaaaaaaaa
        s_mov_b32 s55, 0xaaaaaaaa
        s_mov_b32 s56, 0xcccccccc
        s_mov_b32 s57, 0xcccccccc
        s_mov_b32 s58, 0
        s_mov_b32 s59, -1
        v_cndmask_b32 v{vSQ}, v{vSQ}, v{vSQ+1}, s[54:55]
        v_cndmask_b32 v{vSQ+2}, v{vSQ+2}, v{vSQ+3}, s[54:55]
        v_cndmask_b32 v{vSQ}, v{vSQ}, v{vSQ+2}, s[56:57]
        v_mov_b32 v{vSQ+1}, v{vSQ}
        v_and_b32 v{vT}, 31, v{vL}
        v_lshrrev_b32 v{vT+1}, 5, v{vL}
        v_permlane32_swap_b32 v{vSQ}, v{vSQ+1}
        v_permlane32_swap_b32 v{vSUM}, v{vSUM+1}
        v_permlane32_swap_b32 v{vCS}, v{vCS+1}
        v_add_f32 v{vSQ}, v{vSQ}, v{vSQ+1}
        v_add_f32 v{vSUM}, v{vSUM}, v{vSUM+1}
        v_add_f32 v{vCS}, v{vCS}, v{vCS+1}
        v_mul_f32 v{vSUM}, {hex(f2u(-1.0/640))}, v{vSUM}     ; -mean
        v_mul_f32 v{vSQ}, {hex(f2u(1.0/640))}, v{vSQ}
        v_fma_f32 v{vSQ}, -v{vSUM}, v{vSUM}, v{vSQ}
        v_max_f32 v{vSQ}, 0, v{vSQ}
        v_add_f32 v{vSQ}, {hex(f2u(1e-5))}, v{vSQ}
        v_rsq_f32 v{vSQ}, v{vSQ}
        s_cmp_lt_u32 s{sNb}, 5
        s_cselect_b32 s30, {hex(f2u(20**-0.5 * math.log2(math.e)))}, 1.0
        v_mul_f32 v{vSQ}, s30, v{vSQ}
        s_lshl_b32 s30, s{sWave}, 7
        v_lshlrev_b32 v{vT+2}, 2, v{vT}
        v_lshl_add_u32 v{vT+3}, v{vT+1}, 9, v{vT+2}
        v_add_u32 v{vT+3}, s30, v{vT+3}
        v_cndmask_b32 v{vSUM}, v{vSUM}, v{vSQ}, s[58:59]
        s_lshl_b32 s31, s{sFcol}, 1
        s_add_u32 s31, s31, s{sTrow}
        s_lshl_b32 s31, s31, 7               ; fi0*128
        v_add_u32 v{vT+4}, s31, v{vT+2}
        ds_write_b32 v{vT+3}, v{vSUM}
        ds_write_b32 v{vT+4}, v{vCS} offset:1024
        s_waitcnt lgkmcnt(0)
        s_barrier
        """)
    a(f"""
    s_cmp_lt_u32 s{sNb}, 5
    s_cselect_b32 s63, 0, 1
    s_cselect_b32 s62, {L.Q_OFF}, {L.KV_OFF}
    s_lshl_b32 s60, {L.Q_HS}, s63
    s_lshl_b32 s61, {L.Q_PS}, s63
    s_mul_i32 s61, s61, s29
    s_add_u32 s62, s62, s61
    v_lshlrev_b32 v{vT+2}, 4, v{vT}
    v_add_u32 v{vT+2}, s62, v{vT+2}
    v_lshlrev_b32 v{vT+3}, 4, v{vT+1}        ; 16*hh
    """)
    for fl, st in enumerate((sT0, sT1)):
        for gp in range(2):
            i = 2*fl + gp
            a(f"""
            v_lshrrev_b32 v{vT+4}, v{vT+3}, s{st+2+gp}
            v_and_b32 v{vT+5}, 31, v{vT+4}
            v_mad_u32_u24 v{vT+5}, v{vT+5}, s60, v{vT+2}
            v_bfe_u32 v{vT+6}, v{vT+4}, 10, 3
            v_lshl_add_u32 v{vST+2*i}, v{vT+6}, 9, v{vT+5}
            v_cmp_eq_u32 s[{sMask+2*i}:{sMask+2*i+1}], 4, v{vT+6}
            v_bfe_u32 v{vT+5}, v{vT+4}, 5, 5
            v_mad_u32_u24 v{vT+5}, v{vT+5}, s60, v{vT+2}
            v_bfe_u32 v{vT+6}, v{vT+4}, 13, 3
            v_lshl_add_u32 v{vST+2*i+1}, v{vT+6}, 9, v{vT+5}
            """)
    mainloop(False)
    vC = vT + 8
    vS = vT + 40
    vD = vT + 44
    a(f"""
    v_add_u32 v{vT+3}, s30, v{vT+2}
    v_xor_b32 v{vT+5}, 128, v{vT+3}
    v_lshlrev_b32 v{vT+4}, 4, v{vT+1}
    v_add_u32 v{vT+4}, s31, v{vT+4}
    v_xor_b32 v{vT+6}, 128, v{vT+4}
    ds_read2st64_b32 {vr(vS,2)}, v{vT+3} offset0:0 offset1:2
    ds_read2st64_b32 {vr(vS+2,2)}, v{vT+5} offset0:0 offset1:2
    """)
    for fl in range(2):
        for g in range(4):
            a(f"ds_read_b128 {vr(vC+16*fl+4*g,4)}, v{vT+4+2*fl} offset:{1024+32*g}")
    for fl in range(2):
        for gp in range(2):
            i = 2*fl + gp
            a(f"s_waitcnt lgkmcnt({6-2*i})")
            d = vD + 8*i
            for tl in range(2):
                for k in range(4):
                    r = ACC(fl,tl) + 8*gp + 2*k
                    a(f"v_pk_fma_f32 {vr(r,2)}, {vr(vC+16*fl+8*gp+2*k,2)}, {vr(vS+2*tl,2)}, {vr(r,2)} op_sel:[0,0,0] op_sel_hi:[1,0,1]")
                for k in range(4):
                    r = ACC(fl,tl) + 8*gp + 2*k
                    a(f"v_pk_mul_f32 {vr(r,2)}, {vr(r,2)}, {vr(vS+2*tl,2)} op_sel:[0,1] op_sel_hi:[1,1]")
                for k in range(4):
                    r = ACC(fl,tl) + 8*gp + 2*k
                    a(f"v_cvt_pk_bf16_f32 v{d+4*tl+k}, v{r}, v{r+1}")
            a(f"""
            s_mov_b64 exec, s[{sMask+2*i}:{sMask+2*i+1}]
            v_swap_b32 v{d+2}, v{d+4}
            v_swap_b32 v{d+3}, v{d+5}
            s_mov_b64 exec, -1
            buffer_store_dwordx4 {vr(d,4)}, v{vST+2*i}, s[{sWS}:{sWS+3}], 0 offen {STP}
            buffer_store_dwordx4 {vr(d+4,4)}, v{vST+2*i+1}, s[{sWS}:{sWS+3}], 0 offen {STP}
            """)
    a("s_endpgm")
    a.label(f"{name}_v")
    a(f"""
    s_mul_i32 s61, s29, {L.KV_PS}
    s_mul_i32 s62, s{sFcol}, 1280
    s_add_u32 s62, s62, s61
    s_add_u32 s62, s62, {L.KV_OFF + 2560}
    s_xor_b32 s63, s{sFcol}, 1
    s_mul_i32 s63, s63, 1280
    s_add_u32 s63, s63, s61
    s_add_u32 s63, s63, {L.KV_OFF + 2560}
    s_sub_u32 s60, s{sNb}, 10
    s_lshl_b32 s60, s60, 2
    s_lshl_b32 s61, s{sFcol}, 1
    s_add_u32 s60, s60, s61
    s_add_u32 s60, s60, s{sTrow}
    s_lshl_b32 s60, s60, 5
    s_mov_b32 s64, {L.KV_HS - 320}
    v_mul_u32_u24 v{vT+2}, 320, v{vT+1}      ; hh*320
    """)
    for fl in range(2):
        a(f"""
        v_add_u32 v{vT+3}, s60, v{vT}
        v_mul_u32_u24 v{vT+4}, 3277, v{vT+3}
        v_lshrrev_b32 v{vT+4}, 16, v{vT+4}   ; head
        v_mad_u32_u24 v{vT+4}, v{vT+4}, s64, v{vT+2}
        v_lshl_add_u32 v{vT+4}, v{vT+3}, 4, v{vT+4}
        v_add_u32 v{vST+2*fl}, s62, v{vT+4}
        v_add_u32 v{vST+2*fl+1}, s63, v{vT+4}
        s_xor_b32 s60, s60, 32
        """)
    mainloop(True)
    vN = vT + 8
    vR = vT + 40
    vCc = vT + 72
    vD = vT + 76
    a(f"""
    v_xor_b32 v{vT+5}, 128, v{vT+4}
    v_lshlrev_b32 v{vT+3}, 4, v{vT+1}
    v_add_u32 v{vT+3}, s30, v{vT+3}
    v_xor_b32 v{vT+6}, 128, v{vT+3}
    ds_read_b32 v{vCc}, v{vT+4} offset:1024
    ds_read_b32 v{vCc+1}, v{vT+5} offset:1024
    """)
    for tl in range(2):
        for g in range(4):
            ad = vT+3 if tl == 0 else vT+6
            a(f"ds_read_b128 {vr(vN+16*tl+4*g,4)}, v{ad} offset:{32*g}")
            a(f"ds_read_b128 {vr(vR+16*tl+4*g,4)}, v{ad} offset:{512+32*g}")
    cnt = 0
    for tl in range(2):
        for m in range(2):
            a(f"s_waitcnt lgkmcnt({12-4*(2*tl+m)})")
            for fl in range(2):
                d = vD + 4*cnt; cnt += 1
                for k in range(4):
                    r = ACC(fl,tl) + 8*m + 2*k
                    a(f"v_pk_fma_f32 {vr(r,2)}, {vr(vN+16*tl+8*m+2*k,2)}, {vr(vCc,2)}, {vr(r,2)} op_sel:[0,{fl},0] op_sel_hi:[1,{fl},1]")
                for k in range(4):
                    r = ACC(fl,tl) + 8*m + 2*k
                    a(f"v_pk_mul_f32 {vr(r,2)}, {vr(r,2)}, {vr(vR+16*tl+8*m+2*k,2)}")
                for k in range(4):
                    r = ACC(fl,tl) + 8*m + 2*k
                    a(f"v_cvt_pk_bf16_f32 v{d+k}, v{r}, v{r+1}")
                a(f"buffer_store_dwordx4 {vr(d,4)}, v{vST+2*fl+tl}, s[{sWS}:{sWS+3}], 0 offen offset:{640*m} {STP}")
    a("s_endpgm")
    a.label(f"{name}_spare")
    a(f"""
    s_cmp_ge_u32 s{sMb}, 14
    s_cbranch_scc1 {name}_end
    v_lshrrev_b32 v2, 4, v0
    v_and_b32 v3, 15, v0
    v_mul_u32_u24 v4, 3456, v2
    v_lshl_add_u32 v4, v3, 4, v4
    s_lshl_b32 s30, s{sMb}, 8
    s_mov_b32 s{sX+2}, {640*3456}
    s_mov_b32 s{sX+3}, 0x20000
    s_mov_b32 s{sWS+2}, {L.WS_END}
    s_mov_b32 s{sWS+3}, 0x20000
    s_mov_b32 s32, 0x00003f80
    s_mov_b32 s33, 0x3f800000
    s_waitcnt lgkmcnt(0)
    s_mov_b32 s{sX}, s8
    s_mov_b32 s{sX+1}, s9
    s_mov_b32 s{sWS}, s10
    s_mov_b32 s{sWS+1}, s11
    """)
    for i in range(40):
        a(f"buffer_load_dwordx4 {vr(16+4*i,4)}, v4, s[{sX}:{sX+3}], s30 offen\ns_add_u32 s30, s30, {16*3456}")
    for j in range(8): a(f"v_mov_b32 v{8+j}, 0")
    for i in range(40):
        a(f"s_waitcnt vmcnt({39-i})")
        for j in range(8):
            a(f"v_dot2_f32_bf16 v{8+j}, v{16+4*i+j//2}, s{32+(j&1)}, v{8+j}")
    a(f"""
    v_lshlrev_b32 v5, 5, v0
    v_lshlrev_b32 v6, 2, v0
    s_nop 1
    ds_write_b128 v5, v[8:11]
    ds_write_b128 v5, v[12:15] offset:16
    s_waitcnt lgkmcnt(0)
    s_barrier
    s_cmp_ge_u32 s{sWave}, 2
    s_cbranch_scc1 {name}_end
    """)
    for i in range(16): a(f"ds_read_b32 v{16+i}, v6 offset:{512*i}")
    a("s_waitcnt lgkmcnt(0)")
    for i in range(1, 16): a(f"v_add_f32 v16, v16, v{16+i}")
    a(f"""
    s_lshl_b32 s30, s{sMb}, 9
    s_add_u32 s30, s30, {L.CS_OFF}
    buffer_store_dword v16, v6, s[{sWS}:{sWS+3}], s30 offen {STP}
    """)
    a.label(f"{name}_end")
    a("s_endpgm")
    tab = f".p2align 4\n{name}_tab:\n" + "".join(f".long {hex(x)}\n" for x in k1_table())
    return a, tab, dict(vgpr=256, agpr=0, sgpr=72, block=256, lds=163840)
```

```python
from asmlib import *
import layout as L
import struct, math
from k1 import STP, f2u

def k2_table():
    out = []
    for wg in range(256):
        jobs = []
        for n in range(20):
            if wg < 40 or wg >= 148:
                isO = wg < 40
                wk = wg if isO else wg - 148
                ks, cg, t = wk >> 1, (wk & 1) * 4 + n // 5, n % 5
                blk0, lone = L.cg80(cg)
                col = lone if t == 4 else (blk0 + t // 2) * 32 + 4 * (t & 1)
                if isO:
                    kh, r = ks // 10, ks % 10
                    row = 320 * kh + (40 * r if r < 8 else 160 * (r - 8) + 16)
                    dst = L.WOP_OFF + ((cg * 20 + ks) * 5 + t) * 1024
                else:
                    row = 32 * ks
                    dst = L.W2P_OFF + ((cg * 54 + ks) * 5 + t) * 1024
                jobs.append((row * 1280 + col * 2, dst | (1 if t == 4 else 0)))
            else:
                Fp = (wg - 40) * 20 + n
                ks, tile = Fp // 108, Fp % 108
                for cg in range(16):
                    c = L.cg112(cg)
                    if c["tb"] <= tile < c["tb"] + c["nt"]: break
                t = tile - c["tb"]
                col = c["lone"] if t == 6 else (c["blk0"] + t // 2) * 32 + 4 * (t & 1)
                dst = L.W1P_OFF + (c["tb"] * 20 + ks * c["nt"] + t) * 1024
                jobs.append((32 * ks * 3456 + col * 2, dst | (1 if t == 6 else 0)))
        for w in range(8):
            for j in range(3):
                n = w + 8 * j
                out += list(jobs[n]) if n < 20 else [jobs[w][0], 0x7ffffc00]
    return out

def gen_k2(name):
    a = Asm()
    vL = 1
    vS = 2
    vO = 66
    vP = 82
    vKm = 90
    vKr = 98
    vV = 100
    vQm, vQr = 116, 120
    vAK, vAR, vAV = 122, 123, 124
    vDM = 125
    vT = 126
    vPK = 132
    vXJ = 156
    vRow, vCp, vCl, vXa, vXb = 164, 165, 166, 167, 169
    vNM = 172
    sWS, sSRC, sXS = 12, 16, 20
    sWave, sHead, sT = 24, 25, 26
    sDo, sDm = 27, 28
    sJ = 32
    sVM = 40
    sRS, sA4 = 42, 43
    sTrip = 44
    a.label(name)
    a(f"""
    s_cmp_ge_u32 s2, 256
    s_cbranch_scc1 {name}_end
    s_load_dwordx2 s[10:11], s[0:1], 64
    s_load_dwordx2 s[4:5], s[0:1], 0
    s_load_dwordx2 s[6:7], s[0:1], 16
    s_load_dwordx4 s[48:51], s[0:1], 32
    v_lshrrev_b32 v{vT}, 6, v0
    v_and_b32 v{vL}, 63, v0
    v_readfirstlane_b32 s{sWave}, v{vT}
    s_and_b32 s3, s2, 7
    s_lshl_b32 s3, s3, 2
    s_bfe_u32 s29, s2, 0x20003
    s_add_u32 s{sHead}, s3, s29
    s_lshr_b32 s{sT}, s2, 5
    s_lshl_b32 s{sT}, s{sT}, 3
    s_add_u32 s{sT}, s{sT}, s{sWave}
    s_lshl_b32 s29, s2, 3
    s_add_u32 s29, s29, s{sWave}
    s_mul_i32 s30, s29, 24
    s_getpc_b64 s[52:53]
    {name}_pc:
    s_add_u32 s52, s52, {name}_tab-{name}_pc
    s_addc_u32 s53, s53, 0
    s_add_u32 s52, s52, s30
    s_addc_u32 s53, s53, 0
    s_load_dwordx2 s[{sJ}:{sJ+1}], s[52:53], 0
    s_load_dwordx2 s[{sJ+2}:{sJ+3}], s[52:53], 8
    s_load_dwordx2 s[{sJ+4}:{sJ+5}], s[52:53], 16
    v_lshlrev_b32 v{vDM}, 4, v{vL}
    s_lshl_b32 s{sDm}, s{sWave}, 10
    s_mul_i32 s{sDo}, s{sHead}, {L.KV_HS}
    s_add_u32 s{sDo}, s{sDo}, s{sDm}
    ; Q addresses
    s_mul_i32 s30, s{sHead}, {L.Q_HS}
    s_lshr_b32 s31, s{sT}, 1
    s_mul_i32 s31, s31, {L.Q_PS}
    s_add_u32 s30, s30, s31
    s_add_u32 s30, s30, {L.Q_OFF}
    s_and_b32 s31, s{sT}, 1
    s_lshr_b32 s45, {hex(L.REMFLAG)}, s{sHead}
    s_and_b32 s45, s45, 1
    s_xor_b32 s46, s31, s45
    s_lshl_b32 s46, s46, 3
    s_add_u32 s46, s46, s30
    s_lshl_b32 s31, s31, 10
    s_add_u32 s30, s30, s31
    v_and_b32 v{vT}, 31, v{vL}
    v_lshlrev_b32 v{vT+1}, 4, v{vT}
    s_mov_b32 s{sWS+2}, {L.WS_END}
    s_mov_b32 s{sWS+3}, 0x20000
    s_mov_b32 m0, s{sDm}
    s_waitcnt lgkmcnt(0)
    s_mov_b32 s{sWS}, s10
    s_mov_b32 s{sWS+1}, s11
    """)
    def dma():
        return f"buffer_load_dwordx4 v{vDM}, s[{sWS}:{sWS+3}], s{sDo} offen lds\ns_add_u32 m0, m0, 8192\ns_add_u32 s{sDo}, s{sDo}, 8192"
    a(dma())
    a(f"""
    buffer_load_dwordx4 {vr(vQm,4)}, v{vDM}, s[{sWS}:{sWS+3}], s30 offen
    buffer_load_dwordx2 {vr(vQr,2)}, v{vT+1}, s[{sWS}:{sWS+3}], s46 offen offset:2048
    """)
    for j in range(1, 4): a(dma())
    a(f"""
    v_lshrrev_b32 v{vT+2}, 5, v{vL}          ; hh
    v_mov_b32 v{vAK}, v{vDM}
    v_xor_b32 v{vT+3}, s45, v{vT+2}
    v_lshl_add_u32 v{vAR}, v{vT+3}, 3, v{vT+1}
    v_mul_u32_u24 v{vT+3}, 320, v{vT+2}
    v_add_u32 v{vAV}, v{vT+3}, v{vT+1}
    s_mov_b32 s{sVM}, 0x000fffff
    s_mov_b32 s{sVM+1}, 0x000fffff
    """)
    for i in range(16): a(f"v_mov_b32 v{vV+i}, 0x3f803f80")
    for i in range(16): a(f"v_mov_b32 v{vO+i}, 0")
    for i in range(4): a(f"v_mov_b32 v{vP+4+i}, 0")
    a(f"""
    s_cmp_lt_u32 s2, 148
    s_cselect_b32 s{sSRC}, s48, s50
    s_cselect_b32 s{sSRC+1}, s49, s51
    s_cselect_b32 s{sRS}, 27, 10
    s_mov_b32 s{sSRC+2}, {640*3456}
    s_mov_b32 s{sSRC+3}, 0x20000
    s_mov_b32 s54, 16
    s_mov_b32 s55, 8
    s_mov_b32 s{sA4}, 4
    s_cmp_lt_u32 s2, 40
    s_cbranch_scc0 {name}_notwo
    s_mov_b32 s{sSRC}, s6
    s_mov_b32 s{sSRC+1}, s7
    s_mov_b32 s{sSRC+2}, {640*1280}
    s_mov_b32 s{sRS}, 10
    s_lshr_b32 s30, s2, 1
    s_cmp_ge_u32 s30, 10
    s_cselect_b32 s31, 10, 0
    s_sub_u32 s30, s30, s31
    s_cmp_lt_u32 s30, 8
    s_cselect_b32 s54, 20, 80
    s_cselect_b32 s55, 4, 40
    s_cselect_b32 s{sA4}, 8, 20
    {name}_notwo:
    s_lshl_b32 s{sRS}, s{sRS}, 7
    s_sub_u32 s{sA4}, s{sA4}, 3
    s_mul_i32 s{sA4}, s{sA4}, s{sRS}
    v_mul_u32_u24 v{vRow}, s54, v{vT+2}
    v_bfe_u32 v{vT+3}, v{vL}, 4, 1
    v_mad_u32_u24 v{vRow}, v{vT+3}, s55, v{vRow}
    v_mul_u32_u24 v{vRow}, s{sRS}, v{vRow}
    v_and_b32 v{vT+3}, 15, v{vL}
    v_lshl_add_u32 v{vCl}, v{vT+3}, 1, v{vRow}
    v_and_b32 v{vT+4}, 12, v{vL}
    v_lshl_add_u32 v{vCp}, v{vT+4}, 1, v{vCl}
    v_mul_u32_u24 v{vXa}, 1280, v{vT+3}
    v_lshrrev_b32 v{vT+4}, 4, v{vL}
    v_lshl_add_u32 v{vXa}, v{vT+4}, 4, v{vXa}
    v_add_u32 v{vXa+1}, 8, v{vXa}
    v_and_b32 v{vT+4}, 7, v{vL}
    v_mul_u32_u24 v{vXb}, 2560, v{vT+4}
    v_and_b32 v{vT+4}, 56, v{vL}
    v_add_u32 v{vXb}, v{vXb}, v{vT+4}
    v_add_u32 v{vXb+1}, 1280, v{vXb}
    s_mov_b32 s{sXS}, s4
    s_mov_b32 s{sXS+1}, s5
    s_mov_b32 s{sXS+2}, {2048*1280}
    s_mov_b32 s{sXS+3}, 0x20000
    """)
    def pack_loads(j):
        ops = []
        ops.append(f"s_bitcmp1_b32 s{sJ+2*j+1}, 0\ns_cselect_b64 vcc, -1, 0\ns_mov_b32 s30, s{sJ+2*j}\nv_cndmask_b32 v{vT+5}, v{vCp}, v{vCl}, vcc")
        for k in range(8):
            o = f"buffer_load_ushort v{vPK+8*j+k}, v{vT+5}, s[{sSRC}:{sSRC+3}], s30 offen"
            if k < 7: o += f"\ns_add_u32 s30, s30, s{sA4 if k == 3 else sRS}"
            ops.append(o)
        return ops
    def x_loads(j):
        return [f"""
        s_add_u32 s56, s29, {2048*j}
        s_mul_i32 s57, s56, 3277
        s_lshr_b32 s57, s57, 16
        s_mul_i32 s58, s57, 20
        s_sub_u32 s58, s56, s58
        s_mul_i32 s57, s57, 20480
        s_lshl_b32 s59, s58, 6
        s_add_u32 s57, s57, s59
        s_lshr_b32 s59, {hex(sum(1 << k for k in range(20) if L.h_split(k)))}, s58
        s_bitcmp1_b32 s59, 0
        s_cselect_b64 vcc, -1, 0
        v_cndmask_b32 v{vT+4}, v{vXa}, v{vXb}, vcc
        v_cndmask_b32 v{vT+5}, v{vXa+1}, v{vXb+1}, vcc""",
        f"buffer_load_dwordx2 {vr(vXJ+4*j,2)}, v{vT+4}, s[{sXS}:{sXS+3}], s57 offen",
        f"buffer_load_dwordx2 {vr(vXJ+4*j+2,2)}, v{vT+5}, s[{sXS}:{sXS+3}], s57 offen"]

    rdKm = lambda t, off: f"ds_read_b128 {vr(vKm+4*t,4)}, v{vAK} offset:{off + 1024*t}"
    rdKr = lambda off: f"ds_read_b64 {vr(vKr,2)}, v{vAR} offset:{off + 2048}"
    rdV = lambda g, off: f"s_mov_b64 exec, s[{sVM}:{sVM+1}]\nds_read_b128 {vr(vV+4*g,4)}, v{vAV} offset:{off + 2560 + 640*g}\ns_mov_b64 exec, -1"
    M2b = lambda d, c="0": f"v_mfma_f32_32x32x4_2b_bf16 {vr(d,32)}, {vr(vKr,2)}, {vr(vQr,2)}, {c}"
    Mm = lambda d, t: f"v_mfma_f32_32x32x16_bf16 {vr(d+16*t,16)}, {vr(vKm+4*t,4)}, {vr(vQm,4)}, {vr(d+16*t,16)}"
    PV = lambda g: f"v_mfma_f32_32x32x16_bf16 {vr(vO,16)}, {vr(vV+4*g,4)}, {vr(vP+4*(g&1),4)}, {vr(vO,16)}"

    a(f"s_waitcnt vmcnt(2)\ns_barrier")
    a(rdKr(0)); a(rdKm(0, 0)); a(rdKm(1, 0))
    a("s_waitcnt lgkmcnt(2)")
    a(M2b(vS))
    a(rdKr(5120))
    a(f"s_mov_b64 exec, s[{sVM}:{sVM+1}]")
    a(f"ds_read_b128 {vr(vV,4)}, v{vAV} offset:2560")
    a("s_mov_b64 exec, -1")
    a.nop(14)
    a("s_waitcnt lgkmcnt(2)")
    a(Mm(vS, 0)); a(rdKm(0, 5120)); a(rdV(1, 0))
    a(Mm(vS, 1)); a(rdKm(1, 5120)); a(rdV(2, 0))
    a("s_setprio 3")
    a.nop(4)

    def iteration(c, off, extra, prio={}):
        cur, nxt = vS + 32*c, vS + 32*(c^1)
        valu = []
        for g in range(4):
            b = cur + 8*g; p = vP + 4*(g&1)
            e = lambda k: f"v_exp_f32 v{b+k}, v{b+k}"
            cv = lambda k: f"v_cvt_pk_bf16_f32 v{p+k}, v{b+2*k}, v{b+2*k+1}"
            valu += [e(0), e(1), e(2), cv(0), e(3), e(4), cv(1), e(5), e(6), cv(2), e(7), None, cv(3)]
        seq = []
        i = 0
        while i < len(valu):
            if valu[i] is None:
                if i + 2 < len(valu):
                    seq.append(valu[i+2]); seq.append(valu[i+1]); i += 3
                else:
                    seq.append("s_nop 0"); seq.append(valu[i+1]); i += 2
            else:
                seq.append(valu[i]); i += 1
        ins = {0: ["s_waitcnt lgkmcnt(3)", M2b(nxt), rdKr(off + 2*5120)],
               9: [PV(3), rdV(3, off)],
               15: [PV(0), rdV(0, off + 5120)],
               21: [Mm(nxt, 0), rdKm(0, off + 2*5120)],
               28: ["s_waitcnt lgkmcnt(4)", PV(1), rdV(1, off + 5120)],
               34: [Mm(nxt, 1), rdKm(1, off + 2*5120)],
               41: [PV(2), rdV(2, off + 5120)]}
        ex = list(extra)
        slots = [0, 9, 15, 21, 28, 34, 41]
        per = -(-len(ex) // 7) if ex else 0
        for k, o in enumerate(seq):
            if k in prio: a(f"s_setprio {prio[k]}")
            if k in ins:
                for x in ins[k]: a(x)
                for _ in range(per):
                    if ex: a(ex.pop(0))
            a(o)
    for i in range(8):
        if i == 1: a("s_waitcnt vmcnt(4)\ns_barrier\ns_setprio 3")
        if i == 4: a("s_waitcnt vmcnt(8)\ns_barrier\ns_setprio 3")
        ex = []
        if i < 4: ex = [dma() for _ in range(4)]
        elif i < 7: ex = pack_loads(i - 4)
        else: ex = x_loads(0) + x_loads(1)
        prio = {0: {24: 2, 38: 1}, 2: {24: 2}, 3: {12: 1, 36: 0}, 6: {0: 2}, 7: {0: 1, 32: 0}}.get(i, {})
        iteration(i & 1, i * 5120, ex, prio)
    a(f"""
    s_waitcnt vmcnt(28)
    s_barrier
    s_setprio 3
    s_mov_b32 s{sTrip}, 0
    v_add_u32 v{vAK}, {8*5120}, v{vAK}
    v_add_u32 v{vAR}, {8*5120}, v{vAR}
    v_add_u32 v{vAV}, {8*5120}, v{vAV}
    """)
    a.label(f"{name}_loop")
    for i in range(4):
        if i == 3:
            a(f"s_cmp_eq_u32 s{sTrip}, 5\ns_cbranch_scc0 {name}_np\ns_setprio 0\n{name}_np:")
        iteration(i & 1, i * 5120, [])
    a(f"""
    v_add_u32 v{vAK}, {4*5120}, v{vAK}
    v_add_u32 v{vAR}, {4*5120}, v{vAR}
    v_add_u32 v{vAV}, {4*5120}, v{vAV}
    s_add_u32 s{sTrip}, s{sTrip}, 1
    s_bitcmp1_b32 {hex(0b010100)}, s{sTrip}
    s_cbranch_scc1 {name}_loop
    s_cmp_eq_u32 s{sTrip}, 6
    s_cbranch_scc1 {name}_fin
    s_cmp_eq_u32 s{sTrip}, 1
    s_cbranch_scc1 {name}_pack
    s_setprio 2
    s_cmp_eq_u32 s{sTrip}, 3
    s_cbranch_scc1 {name}_loop
    s_setprio 1
    s_branch {name}_loop
    """)
    a.label(f"{name}_pack")
    a("s_waitcnt vmcnt(0)")
    for j in range(3):
        for k in range(4):
            a(f"v_lshl_or_b32 v{vPK+8*j+k}, v{vPK+8*j+2*k+1}, 16, v{vPK+8*j+2*k}")
        a(f"s_and_b32 s30, s{sJ+2*j+1}, -2")
        a(f"buffer_store_dwordx4 {vr(vPK+8*j,4)}, v{vDM}, s[{sWS}:{sWS+3}], s30 offen {STP}")
    a(f"""
    s_lshl_b32 s30, s29, 10
    s_add_u32 s30, s30, {L.XF_OFF}
    buffer_store_dwordx4 {vr(vXJ,4)}, v{vDM}, s[{sWS}:{sWS+3}], s30 offen {STP}
    s_cmp_lt_u32 s29, 512
    s_cbranch_scc0 {name}_loop
    s_add_u32 s30, s30, {2048*1024}
    buffer_store_dwordx4 {vr(vXJ+4,4)}, v{vDM}, s[{sWS}:{sWS+3}], s30 offen {STP}
    s_branch {name}_loop
    """)
    a.label(f"{name}_fin")
    a("s_waitcnt lgkmcnt(0)")
    a(PV(3))
    a(f"""
    s_lshr_b32 s30, s{sHead}, 4
    s_mul_i32 s30, s30, 10240
    s_mul_i32 s31, s{sT}, 40960
    s_add_u32 s30, s30, s31
    s_add_u32 s30, s30, {L.OF_OFF}
    s_and_b32 s31, s{sHead}, 15
    s_lshl_b32 s46, s31, 7
    s_add_u32 s46, s46, s30
    s_add_u32 s46, s46, 8192
    s_lshl_b32 s31, s31, 9
    s_add_u32 s45, s30, s31
    v_bfe_u32 v{vT}, v{vL}, 4, 1
    v_mul_u32_u24 v{vT}, 20480, v{vT}
    v_and_b32 v{vT+1}, 15, v{vL}
    v_lshrrev_b32 v{vT+2}, 5, v{vL}
    v_lshl_add_u32 v{vT+3}, v{vT+1}, 3, v{vT}
    v_lshl_add_u32 v{vT}, v{vT+1}, 4, v{vT}
    v_lshl_add_u32 v{vT+2}, v{vT+2}, 8, v{vT}
    ; safety check of the un-shifted exponentials: row sum inside [2^-60, 2^60] and finite accumulators
    v_add_f32 v{vT}, abs(v{vO}), abs(v{vO+1})
    v_add_f32 v{vT+1}, abs(v{vO+2}), abs(v{vO+3})
    v_add_f32 v{vT}, abs(v{vO+4}), v{vT}
    v_add_f32 v{vT+1}, abs(v{vO+5}), v{vT+1}
    v_add_f32 v{vT}, abs(v{vO+6}), v{vT}
    v_add_f32 v{vT+1}, abs(v{vO+7}), v{vT+1}
    v_add_f32 v{vT}, abs(v{vO+8}), v{vT}
    v_add_f32 v{vT+1}, abs(v{vO+9}), v{vT+1}
    v_add_f32 v{vT}, abs(v{vO+10}), v{vT}
    v_add_f32 v{vT+1}, abs(v{vO+11}), v{vT+1}
    v_add_f32 v{vT}, v{vT}, v{vT+1}
    s_mov_b32 s60, {hex(f2u(2.0**120))}
    s_mov_b32 s61, {hex(f2u(2.0**60))}
    s_mov_b32 s62, {hex(f2u(2.0**-60))}
    v_cmp_gt_f32 s[54:55], s60, v{vT}
    v_cmp_gt_f32 s[56:57], s61, v{vO+12}
    v_cmp_lt_f32 s[58:59], s62, v{vO+12}
    s_nop 1
    s_and_b64 s[54:55], s[54:55], s[56:57]
    s_and_b64 s[54:55], s[54:55], s[58:59]
    s_cmp_eq_u64 s[54:55], -1
    s_cbranch_scc0 {name}_slow
    {name}_out:
    v_rcp_f32 v{vT}, v{vO+12}
    s_nop 0
    """)
    for k in range(12): a(f"v_mul_f32 v{vO+k}, v{vO+k}, v{vT}")
    for k in range(6): a(f"v_cvt_pk_bf16_f32 v{vP+k}, v{vO+2*k}, v{vO+2*k+1}")
    a(f"""
    buffer_store_dwordx4 {vr(vP,4)}, v{vT+2}, s[{sWS}:{sWS+3}], s45 offen {STP}
    s_mov_b32 exec_hi, 0
    buffer_store_dwordx2 {vr(vP+4,2)}, v{vT+3}, s[{sWS}:{sWS+3}], s46 offen {STP}
    """)
    a.label(f"{name}_end")
    a("s_endpgm")
    a.label(f"{name}_slow")
    def rewind(n):
        for r in (vAK, vAR, vAV): a(f"v_subrev_u32 v{r}, {n}, v{r}")
    def scores(c):
        a(rdKr(0)); a(rdKm(0, 0)); a(rdKm(1, 0))
        for g in range(4): a(rdV(g, 0))
        a("s_waitcnt lgkmcnt(0)")
        a(M2b(vS, c)); a.nop(18); a(Mm(vS, 0)); a(Mm(vS, 1)); a.nop(12)
    def advance(lbl):
        for r in (vAK, vAR, vAV): a(f"v_add_u32 v{r}, 5120, v{r}")
        a(f"s_add_u32 s{sTrip}, s{sTrip}, 1\ns_cmp_lt_u32 s{sTrip}, 32\ns_cbranch_scc1 {lbl}")
    rewind(32*5120)
    a(f"v_mov_b32 v{vT}, 0xff800000\ns_mov_b32 s{sTrip}, 0")
    a.label(f"{name}_slow1")
    scores("0")
    for k in range(16): a(f"v_max3_f32 v{vT}, v{vS+2*k}, v{vS+2*k+1}, v{vT}")
    advance(f"{name}_slow1")
    rewind(32*5120)
    a(f"v_mov_b32 v{vT+1}, v{vT}\ns_nop 1\nv_permlane32_swap_b32 v{vT}, v{vT+1}\nv_max_f32 v{vT}, v{vT}, v{vT+1}")
    for k in range(32): a(f"v_sub_f32 v{vNM+k}, 0, v{vT}")
    for k in range(16): a(f"v_mov_b32 v{vO+k}, 0")
    a(f"s_mov_b32 s{sTrip}, 0")
    a.label(f"{name}_slow2")
    scores(vr(vNM, 32))
    for k in range(32): a(f"v_exp_f32 v{vS+k}, v{vS+k}")
    for g in range(4):
        for k in range(4): a(f"v_cvt_pk_bf16_f32 v{vP+4*(g&1)+k}, v{vS+8*g+2*k}, v{vS+8*g+2*k+1}")
        a.nop(2)
        a(PV(g))
    advance(f"{name}_slow2")
    a.nop(12)
    a(f"s_branch {name}_out")
    tab = f".p2align 4\n{name}_tab:\n" + "".join(f".long {hex(x)}\n" for x in k2_table())
    return a, tab, dict(vgpr=208, agpr=0, sgpr=72, block=512, lds=163840)
```

```python
from asmlib import *
import layout as L
import struct, math
from k1 import STP, f2u

sWS, sOUT = 12, 16
sWave, sRb, sCg, sTt, sKh = 24, 25, 26, 27, 28
sWo, sM0, sA0, sA1 = 32, 33, 34, 35
vL, vDM, vSP = 1, 2, 3
vB = 4
vT = 8
vW = 16
vACC = 44
vE = 100

def prologue(a, name, rbits):
    a.label(name)
    a(f"""
    s_cmp_ge_u32 s2, 256
    s_cbranch_scc1 {name}_end
    s_load_dwordx2 s[10:11], s[0:1], 64
    s_load_dwordx2 s[8:9], s[0:1], 48
    v_lshrrev_b32 v{vT}, 6, v0
    v_and_b32 v{vL}, 63, v0
    v_readfirstlane_b32 s{sWave}, v{vT}
    s_lshr_b32 s29, s2, 3
    s_bfe_u32 s{sRb}, s2, 0x20001
    s_lshl_b32 s{sRb}, s{sRb}, {rbits}
    s_and_b32 s30, s29, {(1 << rbits) - 1}
    s_add_u32 s{sRb}, s{sRb}, s30
    s_and_b32 s{sCg}, s2, 1
    s_lshl_b32 s{sCg}, s{sCg}, {5 - rbits}
    s_lshr_b32 s30, s29, {rbits}
    s_add_u32 s{sCg}, s{sCg}, s30
    v_lshlrev_b32 v{vDM}, 4, v{vL}
    v_and_b32 v{vT}, 15, v{vL}
    v_lshrrev_b32 v{vT+1}, 4, v{vL}
    v_lshlrev_b32 v{vT+2}, 3, v{vT}
    v_lshl_add_u32 v{vSP}, v{vT+1}, 8, v{vT+2}
    s_mov_b32 s{sWS+2}, {L.WS_END}
    s_mov_b32 s{sWS+3}, 0x20000
    """)

def gemm(a, nt, nsteps, ksplit, sstep, nslots, split, pre_ops, n_pre, init, depth):
    nst = -(-nsteps // sstep)
    share = 2 if ksplit == 2 else 4
    slotb = ksplit * sstep * nt * 1024
    def stage_ops(s):
        steps = list(range(s*sstep, min(nsteps, (s+1)*sstep)))
        ops = []
        full = len(steps) == sstep
        npc = sstep * nt // share if full else -(-len(steps) * nt // share)
        slot = (s % nslots) * slotb
        for p in range(npc):
            o = ""
            if p % 4 == 0:
                if not full and p == 0:
                    cut = (sstep * nt // share - (len(steps) * nt - npc)) * 1024
                    o += f"s_mul_i32 s30, s{sTt}, {cut}\ns_sub_u32 s{sWo}, s{sWo}, s30\ns_sub_u32 s{sM0}, s{sM0}, s30\n"
                o += f"s_add_u32 m0, s{sM0}, {slot + p*1024}\ns_add_u32 s31, s{sWo}, {s*sstep*nt*1024 + p*1024}\n"
            o += f"buffer_load_dwordx4 v{vDM}, s[{sWS}:{sWS+3}], s31 offen offset:{(p%4)*1024} lds"
            ops.append(o)
        for n in steps:
            for tl in range(2):
                so = (sA0, sA1)[tl]
                o = ""
                if n % 4 == 0 and n > 0: o = f"s_add_u32 s{so}, s{so}, 4096\n"
                d = 8*n + 4*tl
                if split(n):
                    ops.append(o + f"buffer_load_dwordx2 {ar(d,2)}, v{vSP}, s[{sWS}:{sWS+3}], s{so} offen offset:{(n%4)*1024}")
                    ops.append(f"buffer_load_dwordx2 {ar(d+2,2)}, v{vSP}, s[{sWS}:{sWS+3}], s{so} offen offset:{(n%4)*1024+128}")
                else:
                    ops.append(o + f"buffer_load_dwordx4 {ar(d,4)}, v{vDM}, s[{sWS}:{sWS+3}], s{so} offen offset:{(n%4)*1024}")
        return ops
    allops = [stage_ops(s) for s in range(nst)]
    cnt = [len(x) for x in allops]
    issued = min(depth, nst)
    for o in allops[0]: a(o)
    for o in pre_ops: a(o)
    for s in range(1, issued):
        for o in allops[s]: a(o)
    assert sum(cnt[:issued]) + n_pre <= 63
    a(f"s_waitcnt vmcnt({sum(cnt[1:issued])})")
    init()
    a("s_barrier")
    def rd(n, t):
        s = n // sstep
        off = (s % nslots) * slotb + ((n % sstep) * nt + t) * 1024
        return f"ds_read_b128 {vr(vW+4*t,4)}, v{vB + off // 65536} offset:{off % 65536}"
    for t in range(nt): a(rd(0, t))
    pend = []
    for n in range(nsteps):
        s = n // sstep
        last_in_stage = (n % sstep == sstep - 1) and n + 1 < nsteps
        for t in range(nt):
            a(f"s_waitcnt lgkmcnt({nt-1 if n + 1 < nsteps else nt-1-t})")
            for tl in range(2):
                c = vACC + 4*(2*t + tl)
                a(f"v_mfma_f32_16x16x32_bf16 {vr(c,4)}, {vr(vW+4*t,4)}, {ar(8*n+4*tl,4)}, {vr(c,4)}")
                if t == 0 and tl == 0 and last_in_stage:
                    for o in pend: a(o)
                    pend = []
                    a(f"s_waitcnt vmcnt({sum(cnt[s+2:issued])})\ns_barrier")
                    if issued < nst:
                        assert nslots >= nst or issued - nslots <= s - 1
                        pend = list(allops[issued]); issued += 1
                        assert sum(cnt[s+2:issued]) <= 63
                elif tl == 0 and pend:
                    a(pend.pop(0))
            if n + 1 < nsteps: a(rd(n + 1, t))
            if pend and t % 2 == 1: a(pend.pop(0))
    assert not pend

def unpack_init(a, src, ntile):
    for tl in range(2):
        for t in range(ntile):
            for k in range(2):
                d = src + 12*tl + 2*t + k
                c = vACC + 4*(2*t + tl) + 2*k
                a(f"v_lshlrev_b32 v{c}, 16, v{d}\nv_and_b32 v{c+1}, 0xffff0000, v{d}")

def setup80(a, nk, woff, aoff, astride, roff):
    hk = nk // 2
    a(f"""
    s_and_b32 s{sTt}, s{sWave}, 1
    s_lshr_b32 s{sKh}, s{sWave}, 1
    s_lshl_b32 s30, s{sCg}, 1
    s_add_u32 s30, s30, s{sKh}
    s_mul_i32 s30, s30, {hk}
    s_add_u32 s30, s30, s{sTt}
    s_mul_i32 s{sWo}, s30, 5120
    s_add_u32 s{sWo}, s{sWo}, {woff}
    s_mul_i32 s{sM0}, s{sWave}, 5120
    s_lshl_b32 s36, s{sRb}, 1
    s_add_u32 s36, s36, s{sTt}
    s_lshl_b32 s30, s36, 2
    s_add_u32 s30, s30, s{sKh}
    s_mul_i32 s{sA0}, s30, {astride // 2}
    s_add_u32 s{sA0}, s{sA0}, {aoff}
    s_add_u32 s{sA1}, s{sA0}, {astride}
    s_lshr_b32 s30, s{sCg}, 1
    s_mul_i32 s30, s30, 5120
    s_and_b32 s31, s{sCg}, 1
    s_mul_i32 s37, s31, 3072
    s_add_u32 s37, s37, s30
    s_lshl_b32 s38, s31, 9
    s_add_u32 s38, s38, s30
    s_add_u32 s38, s38, 2048
    s_mul_i32 s39, s36, 40960
    s_cmp_eq_u32 s{sKh}, 0
    s_cselect_b32 s30, 0, 0x40000000
    s_add_u32 s30, s30, s39
    s_add_u32 s30, s30, {roff}
    s_add_u32 s40, s30, s37
    s_add_u32 s41, s30, s38
    s_add_u32 s42, s40, 20480
    s_add_u32 s43, s41, 20480
    s_mul_i32 s30, s{sKh}, 10240
    v_add_u32 v{vB}, s30, v{vDM}
    v_add_u32 v{vB+1}, 0x10000, v{vB}
    v_add_u32 v{vB+2}, 0x20000, v{vB}
    v_lshlrev_b32 v{vT+3}, 3, v{vL}
    s_waitcnt lgkmcnt(0)
    s_mov_b32 s{sWS}, s10
    s_mov_b32 s{sWS+1}, s11
    """)
    ops = []
    for tl in range(2):
        b = vE + 12*tl
        ops.append(f"buffer_load_dwordx4 {vr(b,4)}, v{vDM}, s[{sWS}:{sWS+3}], s{40+2*tl} offen")
        ops.append(f"buffer_load_dwordx4 {vr(b+4,4)}, v{vDM}, s[{sWS}:{sWS+3}], s{40+2*tl} offen offset:1024")
        ops.append(f"buffer_load_dwordx2 {vr(b+8,2)}, v{vT+3}, s[{sWS}:{sWS+3}], s{41+2*tl} offen")
    return ops

def gen_k3(name):
    a = Asm()
    prologue(a, name, 3)
    pre = setup80(a, 20, L.WOP_OFF, L.OF_OFF, 20480, L.XF_OFF)
    gemm(a, 5, 10, 2, 2, 5, L.o_split, pre, 6, lambda: unpack_init(a, vE, 5), 5)
    X0 = 102400
    a(f"""
    s_mul_i32 s30, s{sWave}, 5120
    s_add_u32 s30, s30, {X0}
    v_add_u32 v{vT+4}, s30, v{vDM}
    s_xor_b32 s31, s{sWave}, 2
    s_mul_i32 s31, s31, 5120
    s_add_u32 s31, s31, {X0}
    v_add_u32 v{vT+5}, s31, v{vDM}
    s_cmp_eq_u32 s{sKh}, 0
    s_cbranch_scc1 {name}_k0
    """)
    for t in range(5):
        for k in range(4): a(f"v_swap_b32 v{vACC+8*t+k}, v{vACC+8*t+4+k}")
    a.label(f"{name}_k0")
    for t in range(5): a(f"ds_write_b128 v{vT+4}, {vr(vACC+8*t+4,4)} offset:{1024*t}")
    a("s_waitcnt lgkmcnt(0)\ns_barrier")
    for t in range(5): a(f"ds_read_b128 {vr(vACC+8*t+4,4)}, v{vT+5} offset:{1024*t}")
    a(f"""
    s_mul_i32 s30, s{sKh}, 20480
    s_add_u32 s30, s30, s39
    s_add_u32 s30, s30, {L.HF_OFF}
    s_add_u32 s40, s30, s37
    s_add_u32 s41, s30, s38
    s_lshl_b32 s30, s36, 1
    s_add_u32 s30, s30, s{sKh}
    s_lshl_b32 s30, s30, 3
    s_add_u32 s30, s30, s{sCg}
    s_lshl_b32 s30, s30, 7
    s_add_u32 s42, s30, {L.ST_OFF}
    s_mov_b32 s44, 0x3f803f80
    v_mov_b32 v{vT+6}, 0
    v_mov_b32 v{vT+7}, 0
    """)
    for t in range(5):
        a(f"s_waitcnt lgkmcnt({4-t})")
        c = vACC + 8*t
        a(f"v_pk_add_f32 {vr(c,2)}, {vr(c,2)}, {vr(c+4,2)}\nv_pk_add_f32 {vr(c+2,2)}, {vr(c+2,2)}, {vr(c+6,2)}")
        a(f"v_cvt_pk_bf16_f32 v{vE+2*t}, v{c}, v{c+1}\nv_cvt_pk_bf16_f32 v{vE+2*t+1}, v{c+2}, v{c+3}")
        if t == 1: a(f"buffer_store_dwordx4 {vr(vE,4)}, v{vDM}, s[{sWS}:{sWS+3}], s40 offen {STP}")
        if t == 3: a(f"buffer_store_dwordx4 {vr(vE+4,4)}, v{vDM}, s[{sWS}:{sWS+3}], s40 offen offset:1024 {STP}")
        if t == 4: a(f"buffer_store_dwordx2 {vr(vE+8,2)}, v{vT+3}, s[{sWS}:{sWS+3}], s41 offen {STP}")
    for k in range(10):
        a(f"v_dot2_f32_bf16 v{vT+6}, v{vE+k}, s44, v{vT+6}\nv_dot2_f32_bf16 v{vT+7}, v{vE+k}, v{vE+k}, v{vT+7}")
    a(f"""
    s_nop 2
    v_mov_b32 v{vT+4}, v{vT+6}
    v_mov_b32 v{vT+5}, v{vT+7}
    s_nop 1
    v_permlane32_swap_b32 v{vT+6}, v{vT+4}
    v_permlane32_swap_b32 v{vT+7}, v{vT+5}
    v_add_f32 v{vT+6}, v{vT+6}, v{vT+4}
    v_add_f32 v{vT+7}, v{vT+7}, v{vT+5}
    v_mov_b32 v{vT+4}, v{vT+6}
    v_mov_b32 v{vT+5}, v{vT+7}
    s_nop 1
    v_permlane16_swap_b32 v{vT+6}, v{vT+4}
    v_permlane16_swap_b32 v{vT+7}, v{vT+5}
    v_add_f32 v{vT+6}, v{vT+6}, v{vT+4}
    v_add_f32 v{vT+7}, v{vT+7}, v{vT+5}
    s_mov_b64 exec, 0xffff
    buffer_store_dwordx2 {vr(vT+6,2)}, v{vT+3}, s[{sWS}:{sWS+3}], s42 offen {STP}
    """)
    a.label(f"{name}_end")
    a("s_endpgm")
    return a, "", dict(vgpr=128, agpr=80, sgpr=72, block=256, lds=122880)

def gen_k5(name):
    a = Asm()
    prologue(a, name, 3)
    pre = setup80(a, 54, L.W2P_OFF, L.GF_OFF, 54*1024, L.HF_OFF)
    gemm(a, 5, 27, 2, 2, 8, L.g_split, pre, 6, lambda: unpack_init(a, vE, 5), 5)
    RS = 336
    a(f"""
    s_barrier
    s_mul_i32 s30, s{sWave}, {32*RS}
    s_and_b32 s31, s{sCg}, 1
    s_lshl_b32 s44, s31, 6
    s_add_u32 s44, s44, s30
    s_xor_b32 s31, s31, 1
    s_lshl_b32 s45, s31, 8
    s_add_u32 s45, s45, s30
    v_mul_u32_u24 v{vT+4}, {RS}, v{vT}
    v_lshl_add_u32 v{vT+5}, v{vT+1}, 4, v{vT+4}
    v_add_u32 v{vT+5}, s45, v{vT+5}
    v_lshl_add_u32 v{vT+4}, v{vT+1}, 5, v{vT+4}
    v_add_u32 v{vT+4}, s44, v{vT+4}
    """)
    for tl in range(2):
        for t in range(5):
            c = vACC + 4*(2*t + tl)
            if t < 4: a(f"ds_write_b128 v{vT+4}, {vr(c,4)} offset:{tl*16*RS + (t//2)*128 + (t&1)*16}")
            else: a(f"ds_write_b128 v{vT+5}, {vr(c,4)} offset:{tl*16*RS}")
    a(f"""
    s_mov_b32 s{sOUT}, s8
    s_mov_b32 s{sOUT+1}, s9
    s_mov_b32 s{sOUT+2}, {2048*1280}
    s_mov_b32 s{sOUT+3}, 0x20000
    s_mul_i32 s30, s{sRb}, {64*1280}
    s_mul_i32 s31, s{sCg}, 160
    s_add_u32 s30, s30, s31
    """)
    for r in range(3):
        b = vE + 4*r
        a(f"""
        v_add_u32 v{b}, {256*r}, v0
        v_mul_u32_u24 v{b+1}, 6554, v{b}
        v_lshrrev_b32 v{b+1}, 16, v{b+1}
        v_mul_u32_u24 v{b+2}, {RS - 320}, v{b+1}
        v_lshl_add_u32 v{b+2}, v{b}, 5, v{b+2}
        v_mul_u32_u24 v{b+3}, {1280 - 160}, v{b+1}
        v_lshl_add_u32 v{b+3}, v{b}, 4, v{b+3}
        """)
    a("s_waitcnt lgkmcnt(0)\ns_barrier")
    def rnd(r):
        d = vW + 16*r if r < 1 else vACC + 16*(r-1)
        return d
    for r in range(3):
        if r == 2: a(f"s_cmp_ge_u32 s{sWave}, 2\ns_cbranch_scc1 {name}_r2")
        d = rnd(r)
        for kh in range(2):
            for h in range(2):
                a(f"ds_read_b128 {vr(d+8*kh+4*h,4)}, v{vE+4*r+2} offset:{kh*64*RS + 16*h}")
    a.label(f"{name}_r2")
    a("s_waitcnt lgkmcnt(0)")
    for r in range(3):
        if r == 2: a(f"s_cmp_ge_u32 s{sWave}, 2\ns_cbranch_scc1 {name}_end")
        d = rnd(r)
        for k in range(4): a(f"v_pk_add_f32 {vr(d+2*k,2)}, {vr(d+2*k,2)}, {vr(d+8+2*k,2)}")
        for k in range(4): a(f"v_cvt_pk_bf16_f32 v{d+8+k}, v{d+2*k}, v{d+2*k+1}")
        a(f"buffer_store_dwordx4 {vr(d+8,4)}, v{vE+4*r+3}, s[{sOUT}:{sOUT+3}], s30 offen {STP}")
    a.label(f"{name}_end")
    a("s_endpgm")
    return a, "", dict(vgpr=128, agpr=216, sgpr=72, block=256, lds=163840)

def gen_k4(name):
    a = Asm()
    prologue(a, name, 2)
    vCSr = vE
    vSt = vE + 28
    LOG2E = math.log2(math.e)
    a(f"""
    s_lshl_b32 s36, s{sRb}, 2
    s_add_u32 s36, s36, s{sWave}
    s_mul_i32 s{sA0}, s36, 40960
    s_add_u32 s{sA0}, s{sA0}, {L.HF_OFF}
    s_add_u32 s{sA1}, s{sA0}, 20480
    s_lshl_b32 s44, s36, 11
    s_add_u32 s44, s44, {L.ST_OFF}
    s_lshr_b32 s37, s{sCg}, 3                ; half
    s_and_b32 s38, s{sCg}, 7
    v_mov_b32 v{vB}, v{vDM}
    v_add_u32 v{vB+1}, 0x10000, v{vB}
    v_add_u32 v{vB+2}, 0x20000, v{vB}
    v_lshlrev_b32 v{vT+3}, 3, v{vL}
    v_lshlrev_b32 v{vT+4}, 5, v{vT+1}        ; q*32
    v_lshlrev_b32 v{vT+5}, 4, v{vT+1}        ; q*16
    s_cmp_ge_u32 s38, 6
    s_cbranch_scc1 {name}_six
    """)
    for nt in (7, 6):
        if nt == 6: a.label(f"{name}_six")
        if nt == 7:
            a(f"""
            s_mul_i32 s39, s38, 7
            s_lshr_b32 s30, s38, 1
            s_mul_i32 s30, s30, 7
            s_and_b32 s31, s38, 1
            s_lshl_b32 s40, s31, 2
            s_add_u32 s40, s40, s30
            s_add_u32 s41, s30, 3
            s_lshl_b32 s41, s41, 1
            s_add_u32 s41, s41, s31
            """)
        else:
            a(f"""
            s_mul_i32 s39, s38, 6
            s_add_u32 s39, s39, 6
            s_mul_i32 s40, s38, 3
            s_add_u32 s40, s40, 3
            s_mov_b32 s41, 0
            """)
        a(f"""
        s_mul_i32 s30, s37, 54
        s_add_u32 s39, s39, s30
        s_add_u32 s41, s41, s30
        s_lshr_b32 s30, s30, 1
        s_add_u32 s40, s40, s30
        s_mul_i32 s{sM0}, s{sWave}, {nt*1024}
        s_mul_i32 s{sWo}, s39, 20480
        s_add_u32 s{sWo}, s{sWo}, s{sM0}
        s_add_u32 s{sWo}, s{sWo}, {L.W1P_OFF}
        s_lshl_b32 s42, s40, 7
        s_add_u32 s42, s42, {L.CS_OFF}
        s_lshl_b32 s43, s41, 6
        s_add_u32 s43, s43, {L.CS_OFF}
        s_waitcnt lgkmcnt(0)
        s_mov_b32 s{sWS}, s10
        s_mov_b32 s{sWS+1}, s11
        """)
        pre = []
        for tl in range(2):
            for h in range(2):
                pre.append(f"buffer_load_dwordx2 {vr(vSt+4*tl+2*h,2)}, v{vSP}, s[{sWS}:{sWS+3}], s44 offen offset:{1024*tl+128*h}")
        for t in range(nt):
            if t < 6: pre.append(f"buffer_load_dwordx4 {vr(vCSr+4*t,4)}, v{vT+4}, s[{sWS}:{sWS+3}], s42 offen offset:{(t//2)*128+(t&1)*16}")
            else: pre.append(f"buffer_load_dwordx4 {vr(vCSr+4*t,4)}, v{vT+5}, s[{sWS}:{sWS+3}], s43 offen")
        def init():
            for tl in range(2):
                b = vSt + 4*tl
                a(f"v_pk_add_f32 {vr(b,2)}, {vr(b,2)}, {vr(b+2,2)}")
            for sw in ("v_permlane32_swap_b32", "v_permlane16_swap_b32"):
                for tl in range(2):
                    b = vSt + 4*tl
                    a(f"v_mov_b32 v{b+2}, v{b}\nv_mov_b32 v{b+3}, v{b+1}")
                a("s_nop 1")
                for tl in range(2):
                    b = vSt + 4*tl
                    a(f"{sw} v{b}, v{b+2}\n{sw} v{b+1}, v{b+3}")
                for tl in range(2):
                    b = vSt + 4*tl
                    a(f"v_pk_add_f32 {vr(b,2)}, {vr(b,2)}, {vr(b+2,2)}")
            for tl in range(2):
                b = vSt + 4*tl
                a(f"""
                v_mul_f32 v{b}, {hex(f2u(-1.0/640))}, v{b}
                v_mul_f32 v{b+1}, {hex(f2u(1.0/640))}, v{b+1}
                v_fma_f32 v{b+1}, -v{b}, v{b}, v{b+1}
                v_max_f32 v{b+1}, 0, v{b+1}
                v_add_f32 v{b+1}, {hex(f2u(1e-5))}, v{b+1}
                v_rsq_f32 v{b+1}, v{b+1}
                s_nop 0
                v_mul_f32 v{b+1}, {hex(f2u(-LOG2E))}, v{b+1}
                """)
            for t in range(nt):
                for tl in range(2):
                    c = vACC + 4*(2*t + tl)
                    for k in range(2):
                        a(f"v_pk_mul_f32 {vr(c+2*k,2)}, {vr(vCSr+4*t+2*k,2)}, {vr(vSt+4*tl,2)} op_sel:[0,0] op_sel_hi:[1,0]")
        gemm(a, nt, 20, 1, 4, 5, L.h_split, pre, len(pre), init, 3)
        a(f"""
        s_mul_i32 s30, s36, {2*54*1024}
        s_add_u32 s30, s30, {L.GF_OFF}
        s_lshl_b32 s40, s40, 10
        s_add_u32 s40, s40, s30
        s_lshl_b32 s41, s41, 9
        s_add_u32 s41, s41, s30
        s_add_u32 s42, s40, {54*1024}
        s_add_u32 s43, s41, {54*1024}
        v_mov_b32 v{vT+6}, {hex(f2u(-LOG2E))}
        v_mov_b32 v{vT+7}, {hex(f2u(-LOG2E))}
        """)
        vTmp = vE + 40
        cnt = 0
        for tp in range(0, nt, 2):
            for tl in range(2):
                ts = [tp, tp+1] if tp + 1 < nt else [tp]
                e = vTmp + 12*(cnt & 1); cnt += 1
                cs = [vACC + 4*(2*t + tl) for t in ts]
                for c in cs:
                    for k in range(2): a(f"v_pk_mul_f32 {vr(c+2*k,2)}, {vr(c+2*k,2)}, {vr(vSt+4*tl,2)} op_sel:[0,1] op_sel_hi:[1,1]")
                for i, c in enumerate(cs):
                    for k in range(4): a(f"v_exp_f32 v{e+4*i+k}, v{c+k}")
                if len(cs) == 1: a("s_nop 0")
                for i, c in enumerate(cs):
                    for k in range(2): a(f"v_pk_fma_f32 {vr(e+4*i+2*k,2)}, {vr(e+4*i+2*k,2)}, {vr(vT+6,2)}, {vr(vT+6,2)}")
                for i, c in enumerate(cs):
                    for k in range(4): a(f"v_rcp_f32 v{e+4*i+k}, v{e+4*i+k}")
                if len(cs) == 1: a("s_nop 0")
                for i, c in enumerate(cs):
                    for k in range(2): a(f"v_pk_mul_f32 {vr(c+2*k,2)}, {vr(c+2*k,2)}, {vr(e+4*i+2*k,2)}")
                for i, c in enumerate(cs):
                    for k in range(2): a(f"v_cvt_pk_bf16_f32 v{e+8+2*i+k}, v{c+2*k}, v{c+2*k+1}")
                if len(cs) == 2:
                    a(f"buffer_store_dwordx4 {vr(e+8,4)}, v{vDM}, s[{sWS}:{sWS+3}], s{40+2*tl} offen offset:{(tp//2)*1024} {STP}")
                else:
                    a(f"buffer_store_dwordx2 {vr(e+8,2)}, v{vT+3}, s[{sWS}:{sWS+3}], s{41+2*tl} offen {STP}")
        a("s_endpgm")
    a.label(f"{name}_end")
    a("s_endpgm")
    return a, "", dict(vgpr=168, agpr=160, sgpr=72, block=256, lds=143360)
```

```python
import json, os
S, D, H, DH, F = 2048, 640, 32, 20, 1728
KV_OFF = 0
KV_HS, KV_PS = 163840, 5120
Q_OFF = KV_OFF + 32 * KV_HS
Q_HS, Q_PS = 81920, 2560
XF_OFF = Q_OFF + 32 * Q_HS
OF_OFF = XF_OFF + 128 * 20480
HF_OFF = OF_OFF + 128 * 20480
GF_OFF = HF_OFF + 128 * 20480
WOP_OFF = GF_OFF + 128 * 54 * 1024
W1P_OFF = WOP_OFF + 800 * 1024
W2P_OFF = W1P_OFF + 2160 * 1024
ST_OFF = W2P_OFF + 2160 * 1024
CS_OFF = ST_OFF + 128 * 1024
WS_END = CS_OFF + F * 4
QK = json.load(open(os.path.join(os.path.dirname(os.path.abspath(__file__)), "qkperm.json")))
def head_struct(h):
    if h == 19: return [(1,2),(3,4)], 0
    if h == 25: return [(0,1),(3,4)], 2
    return [(0,1),(2,3)], 4
REMFLAG = 0
for nb5 in range(5):
    for p, it in enumerate(QK[nb5]):
        if it["rem"]:
            fcol = (p // 4) >> 1
            for h in it["h"]: REMFLAG |= fcol << h
def cg80(cg):
    u = cg >> 1
    return (5*u + (3 if cg & 1 else 0), (5*u + 2) * 32 + 16 * (cg & 1))
def cg112(cg):
    hf, c = cg >> 3, cg & 7
    if c < 6:
        u = c >> 1
        return dict(nt=7, tb=hf*54 + 7*c, blk0=27*hf + 7*u + (4 if c & 1 else 0), lone=(27*hf + 7*u + 3) * 32 + 16 * (c & 1))
    return dict(nt=6, tb=hf*54 + 42 + 6*(c-6), blk0=27*hf + 21 + 3*(c-6), lone=None)
def h_split(ks): return ks % 5 == 2
def g_split(ks): return (ks % 27) < 21 and (ks % 27) % 7 == 3
def o_split(ks): return ks % 10 >= 8
```

```python
import sys
from asmlib import *
from k1 import gen_k1
from k2 import gen_k2
from k345 import gen_k3, gen_k4, gen_k5
NAME = "sequential_preLN__softmax_full_mha__dense_activation_silu__prompt"
ref = open(f"cdna_kernels/{NAME}.s.ref").read().split("\n")
hdr = [l for l in ref[:11] if l.startswith(";") and "@launch" not in l and "Override launch" not in l]
ks = [("qkv_kernel", gen_k1), ("attn_kernel", gen_k2), ("oproj_kernel", gen_k3), ("ffn1_kernel", gen_k4), ("ffn2_kernel", gen_k5)]
out = "\n".join(hdr) + "\n"
body = ""; desc = ""; bad = 0
for n, g in ks:
    a, tab, d = g(n)
    bad += check(a.lines, n)
    out += f"; @launch kernel={n} grid=(256,1,1) block=({d['block']},1,1) lds={d['lds']}\n"
    body += f".globl {n}\n.p2align 8\n.type {n},@function\n" + a.text() + tab
    acc = (d['vgpr'] + 3) // 4 * 4
    desc += f""".p2align 6
.amdhsa_kernel {n}
  .amdhsa_next_free_vgpr {acc + d['agpr'] if d['agpr'] else d['vgpr']}
  .amdhsa_next_free_sgpr {d['sgpr']}
  .amdhsa_accum_offset {acc}
  .amdhsa_group_segment_fixed_size 0
  .amdhsa_kernarg_size 72
  .amdhsa_user_sgpr_count 2
  .amdhsa_user_sgpr_kernarg_segment_ptr 1
  .amdhsa_system_sgpr_workgroup_id_x 1
.end_amdhsa_kernel
"""
out += '.amdgcn_target "amdgcn-amd-amdhsa--gfx950"\n.text\n' + body + '.section .rodata,"a"\n' + desc
dst = sys.argv[1] if len(sys.argv) > 1 else f"cdna_kernels/{NAME}.s"
open(dst, "w").write(out)
print("hazards:", bad, "bytes:", len(out))
```
